```python
import torch

def _softmax(x, axis=-1):
    return torch.softmax(x, dim=axis)

def _gelu(x):
    return torch.nn.functional.gelu(x, approximate='tanh')

def _silu(x):
    return torch.nn.functional.silu(x)

def _sigmoid(x):
    return torch.sigmoid(x)

def _layernorm(x, axis=-1, eps=1e-05):
    m = x.mean(dim=axis, keepdim=True)
    v = x.var(dim=axis, keepdim=True, unbiased=False)
    return (x - m) / torch.sqrt(v + eps)

def _scatter_add(tgt, idx, src, axis=0):
    return tgt.clone().index_add_(axis, idx, src)

def _segment_sum(src, seg, n):
    out = torch.zeros((n,) + src.shape[1:], dtype=src.dtype)
    return out.index_add_(0, seg, src)

def _pad(x, pw):
    flat = tuple((v for pair in reversed(pw) for v in pair))
    return torch.nn.functional.pad(x, flat)
kernel_name = 'sequential_preLN__ssm_conv_h3__mixer_gmlp__prompt'

def setup_inputs():

    _w = lambda a: (lambda t: t.to(torch.bfloat16) if t.is_floating_point() else t)(torch.as_tensor(a))

    def _A_setup():
        B, S, D = (1, 2048, 448)
        ks = 4
        return {'q': _w((lambda *s: torch.randn(*s, dtype=torch.bfloat16) * 0.05)(B, S, D)), 'k': _w((lambda *s: torch.randn(*s, dtype=torch.bfloat16) * 0.4)(B, S, D)), 'v': _w((lambda *s: torch.randn(*s, dtype=torch.bfloat16) * 0.4)(B, S, D)), 'shift_k': _w((lambda *s: torch.randn(*s, dtype=torch.bfloat16) * 0.4)(D, ks) * 0.5), 'ssm_k': _w((lambda *s: torch.randn(*s, dtype=torch.bfloat16) * 0.4)(D, S) * (1.0 / S ** 0.5)), 'ssm_D': _w((lambda *s: torch.randn(*s, dtype=torch.bfloat16) * 0.4)(D))}
    _A_in = _A_setup()

    def _B_setup():
        B, S, D, F = (1, 2048, 448, 1792)
        Fh = F // 2
        return {'x': _w((lambda *s: torch.randn(*s, dtype=torch.bfloat16) * 0.05)(B, S, D)), 'w_in': _w((lambda *s: torch.randn(*s, dtype=torch.bfloat16) * 0.4)(D, 2 * Fh)), 'w_sp': _w(0.01 * (lambda *s: torch.randn(*s, dtype=torch.bfloat16) * 0.4)(S, S)), 'b_sp': _w(1.0 + 0.01 * (lambda *s: torch.randn(*s, dtype=torch.bfloat16) * 0.05)(S)), 'w_out': _w((lambda *s: torch.randn(*s, dtype=torch.bfloat16) * 0.05)(Fh, D))}
    _B_in = _B_setup()
    return {'A_q': _A_in['q'], 'A_k': _A_in['k'], 'A_v': _A_in['v'], 'A_shift_k': _A_in['shift_k'], 'A_ssm_k': _A_in['ssm_k'], 'A_ssm_D': _A_in['ssm_D'], 'B_x': _B_in['x'], 'B_w_in': _B_in['w_in'], 'B_w_sp': _B_in['w_sp'], 'B_b_sp': _B_in['b_sp'], 'B_w_out': _B_in['w_out']}

def reference(A_q, A_k, A_v, A_shift_k, A_ssm_k, A_ssm_D, B_x, B_w_in, B_w_sp, B_b_sp, B_w_out):

    def _A_ref(q, k, v, shift_k, ssm_k, ssm_D):
        B, S, D = q.shape
        ks = shift_k.shape[-1]
        k_pad = _pad(k, ((0, 0), (ks - 1, 0), (0, 0)))
        k_shift = torch.zeros_like(k)
        for t in range(ks):
            k_shift = k_shift + k_pad[:, t:t + S, :] * shift_k[:, ks - 1 - t][None, None, :]
        kv = k_shift * v
        L = 2 * S
        kv_pad = _pad(kv, ((0, 0), (0, S), (0, 0)))
        kf_pad = _pad(ssm_k, ((0, 0), (0, S)))
        kv_f = (lambda x, axes=(-2, -1): torch.fft.rfft2(x.float(), dim=axes))(kv_pad[:, None, :, :], axes=(1, 2))
        kf_f = (lambda x, axes=(-2, -1): torch.fft.rfft2(x.float(), dim=axes))(kf_pad[:, None, :], axes=(1, 2))
        kf_f = (lambda x, *d: x.permute(*d))(kf_f, 1, 2, 0)
        y_f = kv_f * kf_f[None, :, :, :]
        y = (lambda x, s, axes=(-2, -1): torch.fft.irfft2(x, s=s, dim=axes).to(torch.bfloat16))(y_f, (1, L), axes=(1, 2))[:, 0, :S, :]
        y = y + kv * ssm_D[None, None, :]
        return q * y

    def _B_ref(x, w_in, w_sp, b_sp, w_out):
        B, S, D = x.shape
        F = w_in.shape[-1]
        Fh = F // 2
        z = _gelu(torch.einsum('bsd,df->bsf', x, w_in))
        z1 = z[..., :Fh].clone()
        z2 = _layernorm(z[..., Fh:], axis=-1)
        g = torch.einsum('ts,bsf->btf', w_sp, z2) + b_sp[None, :, None]
        return torch.einsum('bsf,fd->bsd', z1 * g, w_out)
    x = A_q
    h = x + _A_ref(_layernorm(x, axis=-1), A_k, A_v, A_shift_k, A_ssm_k, A_ssm_D)
    h2 = h + _B_ref(_layernorm(h, axis=-1), B_w_in, B_w_sp, B_b_sp, B_w_out)
    return h2
```

```python
class Kern:
    def __init__(self, name, vgprs=256, sgprs=102, accum=None, lds=0):
        self.name = name
        self.lines = []
        self.vgprs = vgprs
        self.sgprs = sgprs
        self.accum = accum
        self.uid = 0

    def __call__(self, s, *a):
        if a:
            s = s % a
        for ln in s.split("\n"):
            self.lines.append("    " + ln.strip())

    def label(self, l):
        self.lines.append(l + ":")

    def newlabel(self, base="L"):
        self.uid += 1
        return "%s_%s_%d" % (self.name.replace("_kernel", ""), base, self.uid)

    def comment(self, c):
        self.lines.append("    ; " + c)

    def text(self):
        out = []
        out.append(".globl %s" % self.name)
        out.append(".p2align 8")
        out.append(".type %s,@function" % self.name)
        out.append("%s:" % self.name)
        out += self.lines
        out.append("    s_endpgm")
        return "\n".join(out)

    def desc(self):
        acc = self.accum if self.accum is not None else ((self.vgprs + 3) // 4) * 4
        return "\n".join([
            ".p2align 6",
            ".amdhsa_kernel %s" % self.name,
            "  .amdhsa_next_free_vgpr %d" % self.vgprs,
            "  .amdhsa_next_free_sgpr %d" % self.sgprs,
            "  .amdhsa_accum_offset %d" % acc,
            "  .amdhsa_group_segment_fixed_size 0",
            "  .amdhsa_kernarg_size 112",
            "  .amdhsa_user_sgpr_count 2",
            "  .amdhsa_user_sgpr_kernarg_segment_ptr 1",
            "  .amdhsa_system_sgpr_workgroup_id_x 1",
            ".end_amdhsa_kernel"])

    def srd(self, sd, sbase, nbytes, off=0):
        if off:
            self("s_add_u32 s%d, s%d, 0x%x" % (sd, sbase, off))
            self("s_addc_u32 s%d, s%d, 0" % (sd + 1, sbase + 1))
        else:
            self("s_mov_b32 s%d, s%d" % (sd, sbase))
            self("s_mov_b32 s%d, s%d" % (sd + 1, sbase + 1))
        self("s_mov_b32 s%d, 0x%x" % (sd + 2, nbytes))
        self("s_mov_b32 s%d, 0x00020000" % (sd + 3))
```

```python
import sys
sys.path.insert(0, "gen")
from asmlib import Kern

S, D, F, FH = 2048, 448, 1792, 896
WS_KVT = 0
WS_YPT = 0x200000
WS_WINT = 0x400000
WS_WOUTT = 0x600000
WS_H = 0x800000
WS_Z1 = 0xA00000
WS_Z2T = 0xE00000
WS_STATS = 0x1200000
WS_Z2NT = 0x1400000
WS_P = 0x1800000
SZ_SD = S * D * 2
SZ_SF = S * FH * 2

def gen_k0():
    k = Kern("prep_kernel", vgprs=128, sgprs=48)
    k("s_load_dwordx2 s[4:5], s[0:1], 8")
    k("s_load_dwordx2 s[6:7], s[0:1], 16")
    k("s_load_dwordx2 s[8:9], s[0:1], 24")
    k("s_load_dwordx2 s[10:11], s[0:1], 56")
    k("s_load_dwordx2 s[12:13], s[0:1], 80")
    k("s_load_dwordx2 s[14:15], s[0:1], 104")
    k("v_lshrrev_b32 v1, 6, v0")
    k("v_and_b32 v2, 63, v0")
    k("s_nop 0")
    k("v_readfirstlane_b32 s3, v1")
    k("s_lshl_b32 s16, s2, 2")
    k("s_nop 1")
    k("s_add_u32 s16, s16, s3")
    k("s_waitcnt lgkmcnt(0)")
    k("s_cmp_lt_u32 s16, 448")
    k("s_cbranch_scc1 prep_kv")
    k("s_cmp_lt_u32 s16, %d" % (448 + 392))
    k("s_cbranch_scc1 prep_win")
    k("s_cmp_lt_u32 s16, %d" % (448 + 392 + 196))
    k("s_cbranch_scc1 prep_wout")
    k("s_endpgm")
    k.label("prep_kv")
    k("s_mul_hi_u32 s17, s16, 0x24924925")
    k("s_mul_i32 s18, s17, 7")
    k("s_sub_u32 s18, s16, s18")
    k.srd(20, 4, SZ_SD)
    k.srd(24, 6, SZ_SD)
    k.srd(28, 8, D * 4 * 2)
    k.srd(32, 14, SZ_SD, WS_KVT)
    k("s_lshl_b32 s18, s18, 6")
    k("v_add_u32 v3, s18, v2")
    k("s_mul_i32 s19, s17, %d" % (32 * 896))
    k("s_sub_u32 s19, s19, 2688")
    k("v_lshlrev_b32 v4, 1, v3")
    k("v_add_u32 v4, s19, v4")
    k("v_lshlrev_b32 v5, 3, v3")
    k("buffer_load_dwordx2 v[10:11], v5, s[28:31], 0 offen")
    for i in range(35):
        k("v_add_u32 v6, %d, v4" % (i * 896))
        k("buffer_load_ushort v%d, v6, s[20:23], 0 offen" % (40 + i))
    for i in range(32):
        k("v_add_u32 v6, %d, v4" % ((i + 3) * 896))
        k("buffer_load_ushort v%d, v6, s[24:27], 0 offen" % (80 + i))
    k("s_waitcnt vmcnt(0)")
    k("v_lshlrev_b32 v12, 16, v10")
    k("v_and_b32 v13, 0xffff0000, v10")
    k("v_lshlrev_b32 v14, 16, v11")
    k("v_and_b32 v15, 0xffff0000, v11")
    for i in range(35):
        k("v_lshlrev_b32 v%d, 16, v%d" % (40 + i, 40 + i))
    for i in range(32):
        k("v_lshlrev_b32 v%d, 16, v%d" % (80 + i, 80 + i))
        k("v_mul_f32 v7, v12, v%d" % (43 + i))
        k("v_fmac_f32 v7, v13, v%d" % (42 + i))
        k("v_fmac_f32 v7, v14, v%d" % (41 + i))
        k("v_fmac_f32 v7, v15, v%d" % (40 + i))
        k("v_mul_f32 v%d, v7, v%d" % (80 + i, 80 + i))
    for j in range(16):
        k("v_cvt_pk_bf16_f32 v%d, v%d, v%d" % (16 + j, 80 + 2 * j, 81 + 2 * j))
    k("s_lshl_b32 s19, s17, 6")
    k("v_lshlrev_b32 v5, 12, v3")
    k("v_add_u32 v5, s19, v5")
    for j in range(4):
        k("buffer_store_dwordx4 v[%d:%d], v5, s[32:35], 0 offen offset:%d" % (16 + 4 * j, 19 + 4 * j, 16 * j))
    k("s_endpgm")

    def transpose(lbl, sbase, base_gw, R, C, wsoff):
        ncg = C // 64
        k.label(lbl)
        k("s_sub_u32 s16, s16, %d" % base_gw)
        magic = (2**32 + ncg - 1) // ncg
        k("s_mul_hi_u32 s17, s16, 0x%x" % magic)
        k("s_mul_i32 s18, s17, %d" % ncg)
        k("s_sub_u32 s18, s16, s18")
        k.srd(20, sbase, R * C * 2)
        k.srd(32, 14, R * C * 2, wsoff)
        k("s_lshl_b32 s18, s18, 6")
        k("v_add_u32 v3, s18, v2")
        k("s_mul_i32 s19, s17, %d" % (32 * C * 2))
        k("v_lshlrev_b32 v4, 1, v3")
        k("v_add_u32 v4, s19, v4")
        for i in range(32):
            k("v_add_u32 v6, %d, v4" % (i * C * 2))
            k("buffer_load_ushort v%d, v6, s[20:23], 0 offen" % (40 + i))
        k("s_waitcnt vmcnt(0)")
        for j in range(16):
            k("v_lshl_or_b32 v%d, v%d, 16, v%d" % (16 + j, 41 + 2 * j, 40 + 2 * j))
        k("s_lshl_b32 s19, s17, 6")
        k("s_mov_b32 s21, %d" % (R * 2))
        k("v_mul_lo_u32 v5, v3, s21")
        k("v_add_u32 v5, s19, v5")
        for j in range(4):
            k("buffer_store_dwordx4 v[%d:%d], v5, s[32:35], 0 offen offset:%d" % (16 + 4 * j, 19 + 4 * j, 16 * j))
        k("s_endpgm")
    transpose("prep_win", 10, 448, D, F, WS_WINT)
    transpose("prep_wout", 12, 448 + 392, FH, D, WS_WOUTT)
    return k

CS = 4384
UOFF = 8 * CS
UB = UOFF + 2560
K1_LDS = UB + 64 * 80

def gen_k1():
    k = Kern("conv_kernel", vgprs=128, sgprs=48)
    k("s_cmp_ge_u32 s2, %d" % D)
    k("s_cbranch_scc1 conv_done")
    k("s_load_dwordx2 s[4:5], s[0:1], 32")
    k("s_load_dwordx2 s[6:7], s[0:1], 40")
    k("s_load_dwordx2 s[36:37], s[0:1], 104")
    k("s_waitcnt lgkmcnt(0)")
    k.srd(8, 4, SZ_SD)
    k.srd(20, 6, D * 2)
    k.srd(12, 36, SZ_SD, WS_KVT)
    k.srd(16, 36, SZ_SD, WS_YPT)
    k("s_lshl_b32 s24, s2, 12")
    k("v_lshlrev_b32 v1, 4, v0")
    k("v_sub_u32 v2, 4064, v1")
    k("v_add_u32 v2, s24, v2")
    k("buffer_load_dwordx4 v[16:19], v2, s[8:11], 0 offen")
    k("buffer_load_dwordx4 v[20:23], v2, s[8:11], 0 offen offset:16")
    k("v_add_u32 v3, s24, v1")
    k("buffer_load_dwordx4 v[24:27], v3, s[12:15], 0 offen")
    k("s_lshl_b32 s25, s2, 1")
    k("v_mov_b32 v4, s25")
    k("buffer_load_ushort v124, v4, s[20:23], 0 offen")
    for r in range(56, 60):
        k("v_mov_b32 v%d, 0" % r)
    k("s_waitcnt vmcnt(0)")
    k("v_cmp_eq_u32 vcc, 255, v0")
    k("s_nop 1")
    for r in range(16, 20):
        k("v_cndmask_b32 v%d, v%d, 0, vcc" % (r, r))
    src = [23, 22, 21, 20, 19, 18, 17, 16]
    for j in range(8):
        k("v_alignbit_b32 v%d, v%d, v%d, 16" % (32 + j, src[j], src[j]))
    for j in range(7):
        k("v_alignbit_b32 v%d, v%d, v%d, 16" % (40 + j, 33 + j, 32 + j))
    for j in range(4):
        k("v_mov_b32 v%d, v%d" % (48 + j, 33 + j))
        k("v_mov_b32 v%d, v%d" % (52 + j, 35 + j))
        k("v_mov_b32 v%d, v%d" % (60 + j, 41 + j))
        k("v_mov_b32 v%d, v%d" % (96 + j, 43 + j))
    regs = {0: 32, 2: 48, 4: 34, 6: 52, 1: 40, 3: 60, 5: 42, 7: 96}
    for a in range(8):
        k("ds_write_b128 v1, v[%d:%d] offset:%d" % (regs[a], regs[a] + 3, a * CS))
    k("v_lshrrev_b32 v5, 2, v0")
    k("v_mul_u32_u24 v5, %d, v5" % CS)
    k("v_and_b32 v6, 3, v0")
    k("v_lshl_add_u32 v5, v6, 4, v5")
    k("v_add_u32 v5, 4096, v5")
    k("v_cmp_gt_u32 vcc, 32, v0")
    k("s_and_saveexec_b64 s[26:27], vcc")
    k("ds_write_b128 v5, v[56:59]")
    k("s_mov_b64 exec, s[26:27]")
    k("v_cmp_gt_u32 vcc, 160, v0")
    k("s_and_saveexec_b64 s[26:27], vcc")
    k("ds_write_b128 v1, v[56:59] offset:%d" % UOFF)
    k("s_mov_b64 exec, s[26:27]")
    k("v_lshrrev_b32 v5, 2, v0")
    k("v_mul_u32_u24 v5, 80, v5")
    k("v_lshl_add_u32 v5, v6, 4, v5")
    k("ds_write_b128 v5, v[24:27] offset:%d" % UB)
    k("s_waitcnt lgkmcnt(0)")
    k("s_barrier")
    k("v_lshrrev_b32 v7, 6, v0")
    k("s_nop 0")
    k("v_readfirstlane_b32 s28, v7")
    k("v_and_b32 v8, 31, v0")
    k("v_bfe_u32 v9, v0, 5, 1")
    k("v_sub_u32 v10, 7, v8")
    k("v_and_b32 v10, 7, v10")
    k("v_mul_u32_u24 v11, %d, v10" % CS)
    k("v_lshlrev_b32 v12, 3, v9")
    k("v_sub_u32 v12, v12, v8")
    k("v_sub_u32 v12, v12, v10")
    k("v_add_u32 v12, 2047, v12")
    k("v_lshl_add_u32 v11, v12, 1, v11")
    k("s_lshl_b32 s29, s28, 6")
    k("s_add_u32 s29, s29, %d" % (256 * 15))
    k("v_subrev_u32 v11, s29, v11")
    k("v_mul_u32_u24 v13, 80, v8")
    k("v_lshl_add_u32 v13, v9, 4, v13")
    k("s_mul_i32 s30, s28, 80")
    k("s_add_u32 s30, s30, %d" % (320 * 15))
    k("s_sub_u32 s30, s30, %d" % UB)
    k("v_subrev_u32 v13, s30, v13")
    for r in range(64, 96):
        k("v_mov_b32 v%d, 0" % r)
    def issue(i, bank):
        ab = 16 + bank * 24
        for h in range(2):
            k("ds_read_b128 v[%d:%d], v11 offset:%d" % (ab + 4 * h, ab + 4 * h + 3, 256 * (15 - i) + 32 * h))
            k("ds_read_b128 v[%d:%d], v13 offset:%d" % (ab + 8 + 4 * h, ab + 11 + 4 * h, 2560 + 320 * (15 - i) + 32 * h))
            if i < 8:
                k("ds_read_b128 v[%d:%d], v13 offset:%d" % (ab + 16 + 4 * h, ab + 19 + 4 * h, 320 * (15 - i) + 32 * h))
    issue(0, 0)
    for i in range(16):
        bank = i & 1
        if i + 1 < 16:
            issue(i + 1, bank ^ 1)
            n_next = 6 if i + 1 < 8 else 4
            k("s_waitcnt lgkmcnt(%d)" % n_next)
        else:
            k("s_waitcnt lgkmcnt(0)")
        ab = 16 + bank * 24
        for h in range(2):
            k("v_mfma_f32_32x32x16_bf16 v[80:95], v[%d:%d], v[%d:%d], v[80:95]" % (ab + 4 * h, ab + 4 * h + 3, ab + 8 + 4 * h, ab + 11 + 4 * h))
            if i < 8:
                k("v_mfma_f32_32x32x16_bf16 v[64:79], v[%d:%d], v[%d:%d], v[64:79]" % (ab + 4 * h, ab + 4 * h + 3, ab + 16 + 4 * h, ab + 19 + 4 * h))
    k("s_nop 15")
    k("s_nop 7")
    k("s_barrier")
    k("v_and_b32 v14, 63, v0")
    k("v_lshlrev_b32 v14, 2, v14")
    k("s_lshl_b32 s31, s28, 13")
    k("v_add_u32 v15, s31, v14")
    for r in range(32):
        k("ds_write_b32 v15, v%d offset:%d" % (64 + r, r * 256))
    k("s_waitcnt lgkmcnt(0)")
    k("s_barrier")
    k("s_lshl_b32 s31, s28, 11")
    k("v_add_u32 v15, s31, v14")
    for ww in range(4):
        for r in range(8):
            k("ds_read_b32 v%d, v15 offset:%d" % (16 + ww * 8 + r, ww * 8192 + r * 256))
    k("s_lshr_b32 s32, s28, 1")
    k("s_and_b32 s33, s28, 1")
    k("s_mul_i32 s34, s32, 2560")
    k("s_lshl_b32 s35, s33, 5")
    k("s_add_u32 s34, s34, s35")
    k("v_mul_u32_u24 v5, 80, v8")
    k("v_lshl_add_u32 v5, v9, 3, v5")
    k("v_add_u32 v5, s34, v5")
    k("ds_read_b64 v[48:49], v5 offset:%d" % UB)
    k("ds_read_b64 v[50:51], v5 offset:%d" % (UB + 16))
    k("v_lshlrev_b32 v125, 16, v124")
    k("s_waitcnt lgkmcnt(0)")
    for r in range(8):
        k("v_add_f32 v%d, v%d, v%d" % (16 + r, 16 + r, 24 + r))
        k("v_add_f32 v%d, v%d, v%d" % (32 + r, 32 + r, 40 + r))
        k("v_add_f32 v%d, v%d, v%d" % (16 + r, 16 + r, 32 + r))
    for q in range(2):
        for j in range(2):
            k("v_lshlrev_b32 v52, 16, v%d" % (48 + 2 * q + j))
            k("v_and_b32 v53, 0xffff0000, v%d" % (48 + 2 * q + j))
            k("v_fmac_f32 v%d, v52, v125" % (16 + 4 * q + 2 * j))
            k("v_fmac_f32 v%d, v53, v125" % (17 + 4 * q + 2 * j))
        k("v_cvt_pk_bf16_f32 v%d, v%d, v%d" % (56 + 2 * q, 16 + 4 * q, 17 + 4 * q))
        k("v_cvt_pk_bf16_f32 v%d, v%d, v%d" % (57 + 2 * q, 18 + 4 * q, 19 + 4 * q))
    k("s_lshl_b32 s34, s32, 11")
    k("s_add_u32 s34, s34, s24")
    k("s_add_u32 s34, s34, s35")
    k("v_lshlrev_b32 v5, 6, v8")
    k("v_lshl_add_u32 v5, v9, 3, v5")
    k("v_add_u32 v5, s34, v5")
    k("buffer_store_dwordx2 v[56:57], v5, s[16:19], 0 offen")
    k("buffer_store_dwordx2 v[58:59], v5, s[16:19], 0 offen offset:16")
    k.label("conv_done")
    return k

HEADER = open("sequential_preLN__ssm_conv_h3__mixer_gmlp__prompt.s.ref").read().split("; Override launch")[0]

def build(kerns, launches):
    out = [HEADER.rstrip("\n")]
    for (name, grid, lds) in launches:
        out.append("; @launch kernel=%s grid=(%d,1,1) block=(256,1,1) lds=%d" % (name, grid, lds))
    out.append('.amdgcn_target "amdgcn-amd-amdhsa--gfx950"')
    out.append(".text")
    for kk in kerns:
        out.append(kk.text())
    out.append('.section .rodata,"a"')
    for kk in kerns:
        out.append(kk.desc())
    return "\n".join(out) + "\n"

if __name__ == "__main__":
    kerns = [gen_k0(), gen_k1()]
    launches = [("prep_kernel", 259, 0), ("conv_kernel", 448, K1_LDS)]
    txt = build(kerns, launches)
    open("sequential_preLN__ssm_conv_h3__mixer_gmlp__prompt.s", "w").write(txt)
    print("written", len(txt))
```

```python
import sys
sys.path.insert(0, "gen")
from asmlib import Kern
from gen import *

GELU_C = -2.0 * 0.7978845608028654 * 1.4426950408889634
import struct
def f2u(f):
    return struct.unpack("<I", struct.pack("<f", f))[0]

def gelu(k, r, t1, t2):
    k("v_mul_f32 v%d, v%d, v%d" % (t1, r, r))
    k("v_fma_f32 v%d, v%d, s40, 1.0" % (t1, t1))
    k("v_mul_f32 v%d, v%d, v%d" % (t1, t1, r))
    k("v_mul_f32 v%d, s41, v%d" % (t1, t1))
    k("v_exp_f32 v%d, v%d" % (t1, t1))
    k("s_nop 0")
    k("v_add_f32 v%d, 1.0, v%d" % (t1, t1))
    k("v_rcp_f32 v%d, v%d" % (t1, t1))
    k("s_nop 0")
    k("v_mul_f32 v%d, v%d, v%d" % (r, r, t1))

def quad_sum(k, r):
    k("s_nop 1")
    k("v_add_f32_dpp v%d, v%d, v%d quad_perm:[1,0,3,2] row_mask:0xf bank_mask:0xf" % (r, r, r))
    k("s_nop 1")
    k("v_add_f32_dpp v%d, v%d, v%d quad_perm:[2,3,0,1] row_mask:0xf bank_mask:0xf" % (r, r, r))
    k("s_nop 1")

STAT = 0
ATILE = 512
YT = ATILE + 64 * 912
K2_LDS = YT + 448 * 144

def gen_k2():
    k = Kern("gemm1_kernel", vgprs=256, sgprs=64)
    k("s_cmp_ge_u32 s2, 224")
    k("s_cbranch_scc1 gemm1_done")
    k("s_load_dwordx2 s[4:5], s[0:1], 0")
    k("s_load_dwordx2 s[36:37], s[0:1], 104")
    k("s_mul_hi_u32 s30, s2, 0x24924925")
    k("s_mul_i32 s31, s30, 7")
    k("s_sub_u32 s31, s2, s31")
    k("s_lshl_b32 s32, s30, 6")
    k("s_mov_b32 s40, 0x%x" % f2u(0.044715))
    k("s_mov_b32 s41, 0x%x" % f2u(GELU_C))
    k("s_waitcnt lgkmcnt(0)")
    k.srd(8, 4, SZ_SD)
    k.srd(12, 36, SZ_SD, WS_YPT)
    k.srd(16, 36, SZ_SD, WS_H)
    k.srd(20, 36, F * D * 2, WS_WINT)
    k.srd(24, 36, SZ_SF, WS_Z1)
    k.srd(44, 36, SZ_SF, WS_Z2T)
    k.srd(48, 36, S * 56, WS_STATS)
    k("v_lshrrev_b32 v1, 3, v0")
    k("v_and_b32 v2, 7, v0")
    k("v_lshlrev_b32 v3, 12, v1")
    k("v_lshl_add_u32 v3, v2, 4, v3")
    k("s_lshl_b32 s33, s32, 1")
    k("v_add_u32 v3, s33, v3")
    k("v_mul_u32_u24 v4, 144, v1")
    k("v_lshl_add_u32 v4, v2, 4, v4")
    k("v_add_u32 v4, %d, v4" % YT)
    for it in range(14):
        k("v_add_u32 v5, 0x%x, v3" % (it * 32 * 4096))
        k("buffer_load_dwordx4 v[%d:%d], v5, s[12:15], 0 offen" % (128 + 4 * it, 131 + 4 * it))
    k("v_lshrrev_b32 v6, 2, v0")
    k("v_and_b32 v7, 3, v0")
    k("v_add_u32 v8, s32, v6")
    k("v_mul_u32_u24 v8, 896, v8")
    k("v_mul_u32_u24 v9, 224, v7")
    k("v_add_u32 v8, v8, v9")
    for i in range(14):
        k("buffer_load_dwordx4 v[%d:%d], v8, s[8:11], 0 offen offset:%d" % (64 + 4 * i, 67 + 4 * i, 16 * i))
    k("v_mov_b32 v10, 0")
    k("v_lshlrev_b32 v11, 2, v0")
    k("v_cmp_gt_u32 vcc, 128, v0")
    k("s_and_saveexec_b64 s[34:35], vcc")
    k("ds_write_b32 v11, v10 offset:%d" % STAT)
    k("s_mov_b64 exec, s[34:35]")
    k("s_waitcnt vmcnt(14)")
    for it in range(14):
        k("ds_write_b128 v4, v[%d:%d] offset:%d" % (128 + 4 * it, 131 + 4 * it, it * 32 * 144))
    k("s_waitcnt vmcnt(0) lgkmcnt(0)")
    k("s_barrier")
    def unpack(src0):
        for i in range(56):
            k("v_lshlrev_b32 v%d, 16, v%d" % (128 + 2 * i, src0 + i))
            k("v_and_b32 v%d, 0xffff0000, v%d" % (129 + 2 * i, src0 + i))
    def stats(mean, rs):
        k("v_mov_b32 v%d, 0" % mean)
        for i in range(112):
            k("v_add_f32 v%d, v%d, v%d" % (mean, mean, 128 + i))
        quad_sum(k, mean)
        k("v_mul_f32 v%d, 0x%x, v%d" % (mean, f2u(1.0 / 448), mean))
        k("v_mov_b32 v%d, 0" % rs)
        for i in range(112):
            k("v_sub_f32 v14, v%d, v%d" % (128 + i, mean))
            k("v_fmac_f32 v%d, v14, v14" % rs)
        quad_sum(k, rs)
        k("v_mov_b32 v14, 0x%x" % f2u(1e-5))
        k("v_fma_f32 v%d, v%d, s42, v14" % (rs, rs))
        k("v_rsq_f32 v%d, v%d" % (rs, rs))
        k("s_nop 0")
    k("s_mov_b32 s42, 0x%x" % f2u(1.0 / 448))
    unpack(64)
    stats(12, 13)
    k("v_mul_u32_u24 v15, %d, v7" % (112 * 144))
    k("v_lshl_add_u32 v15, v6, 1, v15")
    k("v_add_u32 v15, %d, v15" % YT)
    for b in range(7):
        for i in range(16):
            k("ds_read_u16 v%d, v15 offset:%d" % (16 + i, (16 * b + i) * 144))
        k("s_waitcnt lgkmcnt(0)")
        for i in range(16):
            e = 128 + 16 * b + i
            k("v_lshlrev_b32 v%d, 16, v%d" % (16 + i, 16 + i))
            k("v_sub_f32 v14, v%d, v12" % e)
            k("v_mul_f32 v14, v14, v13")
            k("v_fmac_f32 v%d, v14, v%d" % (e, 16 + i))
        for i in range(8):
            k("v_cvt_pk_bf16_f32 v%d, v%d, v%d" % (64 + 8 * b + i, 128 + 16 * b + 2 * i, 129 + 16 * b + 2 * i))
    unpack(64)
    stats(12, 13)
    k("s_cmp_lg_u32 s31, 0")
    k("s_cbranch_scc1 gemm1_noh")
    for i in range(14):
        k("buffer_store_dwordx4 v[%d:%d], v8, s[16:19], 0 offen offset:%d" % (64 + 4 * i, 67 + 4 * i, 16 * i))
    k.label("gemm1_noh")
    k("v_mul_u32_u24 v15, 912, v6")
    k("v_add_u32 v15, v15, v9")
    for i in range(56):
        k("v_sub_f32 v%d, v%d, v12" % (128 + 2 * i, 128 + 2 * i))
        k("v_sub_f32 v%d, v%d, v12" % (129 + 2 * i, 129 + 2 * i))
        k("v_mul_f32 v%d, v%d, v13" % (128 + 2 * i, 128 + 2 * i))
        k("v_mul_f32 v%d, v%d, v13" % (129 + 2 * i, 129 + 2 * i))
        k("v_cvt_pk_bf16_f32 v%d, v%d, v%d" % (16 + (i % 4), 128 + 2 * i, 129 + 2 * i))
        if i % 4 == 3:
            k("ds_write_b128 v15, v[16:19] offset:%d" % (ATILE + 16 * (i // 4)))
            k("s_nop 1")
    k("s_waitcnt vmcnt(0) lgkmcnt(0)")
    k("s_barrier")
    k("v_lshrrev_b32 v1, 6, v0")
    k("s_nop 0")
    k("v_readfirstlane_b32 s28, v1")
    k("v_and_b32 v2, 31, v0")
    k("v_bfe_u32 v3, v0, 5, 1")
    k("s_lshr_b32 s29, s28, 1")
    k("s_and_b32 s34, s28, 1")
    k("s_lshl_b32 s35, s31, 7")
    k("s_lshl_b32 s38, s34, 6")
    k("s_add_u32 s35, s35, s38")
    k("s_mul_i32 s38, s29, 896")
    k("s_add_u32 s38, s38, s35")
    k("v_add_u32 v4, s38, v2")
    k("v_mul_u32_u24 v4, 896, v4")
    k("v_lshl_add_u32 v4, v3, 6, v4")
    k("v_add_u32 v5, %d, v4" % (32 * 896))
    k("v_mul_u32_u24 v6, 912, v2")
    k("v_lshl_add_u32 v6, v3, 6, v6")
    for r in range(64, 128):
        k("v_mov_b32 v%d, 0" % r)
    def wload(kc):
        b = 128 + (kc & 1) * 32
        for ct in range(2):
            for t in range(4):
                k("buffer_load_dwordx4 v[%d:%d], v%d, s[20:23], 0 offen offset:%d" % (b + ct * 16 + 4 * t, b + ct * 16 + 4 * t + 3, 4 + ct, kc * 128 + 16 * t))
    k("s_cmp_eq_u32 s29, 1")
    k("s_cbranch_scc1 gemm1_z2")
    for half in range(2):
        if half == 1:
            k.label("gemm1_z2")
        wload(0)
        for kc in range(7):
            if kc + 1 < 7:
                wload(kc + 1)
            for rt in range(2):
                for t in range(4):
                    k("ds_read_b128 v[%d:%d], v6 offset:%d" % (192 + rt * 16 + 4 * t, 195 + rt * 16 + 4 * t, ATILE + rt * 32 * 912 + kc * 128 + 16 * t))
            k("s_waitcnt vmcnt(%d) lgkmcnt(0)" % (8 if kc + 1 < 7 else 0))
            b = 128 + (kc & 1) * 32
            for t in range(4):
                for rt in range(2):
                    for ct in range(2):
                        acc = 64 + (rt * 2 + ct) * 16
                        wf = b + ct * 16 + 4 * t
                        af = 192 + rt * 16 + 4 * t
                        if half == 0:
                            k("v_mfma_f32_32x32x16_bf16 v[%d:%d], v[%d:%d], v[%d:%d], v[%d:%d]" % (acc, acc + 15, wf, wf + 3, af, af + 3, acc, acc + 15))
                        else:
                            k("v_mfma_f32_32x32x16_bf16 v[%d:%d], v[%d:%d], v[%d:%d], v[%d:%d]" % (acc, acc + 15, af, af + 3, wf, wf + 3, acc, acc + 15))
        k("s_nop 15")
        k("s_nop 7")
        for r in range(64, 128):
            gelu(k, r, 7, 8)
        for a in range(4):
            for p in range(8):
                k("v_cvt_pk_bf16_f32 v%d, v%d, v%d" % (128 + a * 8 + p, 64 + a * 16 + 2 * p, 65 + a * 16 + 2 * p))
        if half == 0:
            k("v_add_u32 v9, s32, v2")
            k("v_mul_u32_u24 v9, 1792, v9")
            k("v_lshl_add_u32 v9, v3, 3, v9")
            k("s_lshl_b32 s39, s35, 1")
            k("v_add_u32 v9, s39, v9")
            for rt in range(2):
                for ct in range(2):
                    for q in range(4):
                        a = rt * 2 + ct
                        off = rt * 32 * 1792 + ct * 64 + q * 16
                        k("v_add_u32 v10, %d, v9" % off)
                        k("buffer_store_dwordx2 v[%d:%d], v10, s[24:27], 0 offen" % (128 + a * 8 + 2 * q, 129 + a * 8 + 2 * q))
            k("s_branch gemm1_fin")
        else:
            k("v_add_u32 v9, s35, v2")
            k("v_lshlrev_b32 v9, 12, v9")
            k("v_lshl_add_u32 v9, v3, 3, v9")
            k("v_add_u32 v9, s33, v9")
            for rt in range(2):
                for ct in range(2):
                    for q in range(4):
                        a = rt * 2 + ct
                        off = rt * 64 + ct * 32 * 4096 + q * 16
                        k("v_add_u32 v10, %d, v9" % off)
                        k("buffer_store_dwordx2 v[%d:%d], v10, s[44:47], 0 offen" % (128 + a * 8 + 2 * q, 129 + a * 8 + 2 * q))
            k("v_lshlrev_b32 v11, 5, v3")
            k("s_mov_b32 s52, 0x80008000")
            k("s_mov_b32 s53, 0x80008000")
            for rt in range(2):
                for i in range(16):
                    p = i // 2
                    sh = (i % 2)
                    for ct in range(2):
                        a = rt * 2 + ct
                        if sh == 0:
                            k("v_lshlrev_b32 v%d, 16, v%d" % (12 + ct, 128 + a * 8 + p))
                        else:
                            k("v_and_b32 v%d, 0xffff0000, v%d" % (12 + ct, 128 + a * 8 + p))
                    k("v_add_f32 v14, v12, v13")
                    k("v_mul_f32 v15, v12, v12")
                    k("v_fmac_f32 v15, v13, v13")
                    for sft in (1, 2, 4, 8):
                        k("s_nop 1")
                        k("v_add_f32_dpp v14, v14, v14 row_shr:%d row_mask:0xf bank_mask:0xf bound_ctrl:0" % sft)
                        k("v_add_f32_dpp v15, v15, v15 row_shr:%d row_mask:0xf bank_mask:0xf bound_ctrl:0" % sft)
                    row = 32 * rt + 8 * (i // 4) + (i % 4)
                    k("s_mov_b64 s[54:55], exec")
                    k("s_mov_b64 exec, s[52:53]")
                    k("ds_add_f32 v11, v14 offset:%d" % (STAT + row * 8))
                    k("ds_add_f32 v11, v15 offset:%d" % (STAT + row * 8 + 4))
                    k("s_mov_b64 exec, s[54:55]")
    k.label("gemm1_fin")
    k("s_waitcnt vmcnt(0) lgkmcnt(0)")
    k("s_barrier")
    k("v_cmp_gt_u32 vcc, 128, v0")
    k("s_and_saveexec_b64 s[34:35], vcc")
    k("s_cbranch_execz gemm1_done")
    k("v_lshlrev_b32 v11, 2, v0")
    k("ds_read_b32 v12, v11 offset:%d" % STAT)
    k("v_lshrrev_b32 v13, 1, v0")
    k("v_add_u32 v13, s32, v13")
    k("v_mul_u32_u24 v13, 56, v13")
    k("v_and_b32 v14, 1, v0")
    k("v_lshl_add_u32 v13, v14, 2, v13")
    k("s_lshl_b32 s39, s31, 3")
    k("v_add_u32 v13, s39, v13")
    k("s_waitcnt lgkmcnt(0)")
    k("buffer_store_dword v12, v13, s[48:51], 0 offen")
    k.label("gemm1_done")
    return k

def gen_k2b():
    k = Kern("norm_kernel", vgprs=128, sgprs=48)
    k("s_cmp_ge_u32 s2, 224")
    k("s_cbranch_scc1 norm_done")
    k("s_load_dwordx2 s[36:37], s[0:1], 104")
    k("s_and_b32 s30, s2, 7")
    k("s_lshr_b32 s31, s2, 3")
    k("s_waitcnt lgkmcnt(0)")
    k.srd(8, 36, S * 56, WS_STATS)
    k.srd(12, 36, SZ_SF, WS_Z2T)
    k.srd(16, 36, SZ_SF, WS_Z2NT)
    k("s_lshl_b32 s32, s30, 8")
    k("v_add_u32 v1, s32, v0")
    k("v_mul_u32_u24 v1, 56, v1")
    for i in range(7):
        k("buffer_load_dwordx2 v[%d:%d], v1, s[8:11], 0 offen offset:%d" % (16 + 2 * i, 17 + 2 * i, 8 * i))
    k("v_lshrrev_b32 v2, 3, v0")
    k("v_and_b32 v3, 7, v0")
    k("s_lshl_b32 s33, s31, 5")
    k("v_add_u32 v4, s33, v2")
    k("v_lshlrev_b32 v4, 12, v4")
    k("v_lshl_add_u32 v4, v3, 6, v4")
    k("s_lshl_b32 s34, s30, 9")
    k("v_add_u32 v4, s34, v4")
    for i in range(4):
        k("buffer_load_dwordx4 v[%d:%d], v4, s[12:15], 0 offen offset:%d" % (32 + 4 * i, 35 + 4 * i, 16 * i))
    k("s_waitcnt vmcnt(4)")
    for i in range(1, 7):
        k("v_add_f32 v16, v16, v%d" % (16 + 2 * i))
        k("v_add_f32 v17, v17, v%d" % (17 + 2 * i))
    k("v_mul_f32 v16, 0x%x, v16" % f2u(1.0 / 896))
    k("v_mul_f32 v17, 0x%x, v17" % f2u(1.0 / 896))
    k("v_fma_f32 v17, -v16, v16, v17")
    k("v_max_f32 v17, 0, v17")
    k("v_add_f32 v17, 0x%x, v17" % f2u(1e-5))
    k("v_rsq_f32 v17, v17")
    k("s_nop 0")
    k("v_mul_f32 v16, v16, v17")
    k("v_lshlrev_b32 v5, 2, v0")
    k("ds_write_b32 v5, v17")
    k("ds_write_b32 v5, v16 offset:1024")
    k("s_waitcnt lgkmcnt(0)")
    k("s_barrier")
    k("v_lshlrev_b32 v6, 7, v3")
    for i in range(8):
        k("ds_read_b128 v[%d:%d], v6 offset:%d" % (48 + 4 * i, 51 + 4 * i, 16 * i))
        k("ds_read_b128 v[%d:%d], v6 offset:%d" % (80 + 4 * i, 83 + 4 * i, 1024 + 16 * i))
    k("s_waitcnt vmcnt(0) lgkmcnt(0)")
    for i in range(16):
        k("v_lshlrev_b32 v8, 16, v%d" % (32 + i))
        k("v_and_b32 v9, 0xffff0000, v%d" % (32 + i))
        k("v_fma_f32 v8, v8, v%d, -v%d" % (48 + 2 * i, 80 + 2 * i))
        k("v_fma_f32 v9, v9, v%d, -v%d" % (49 + 2 * i, 81 + 2 * i))
        k("v_cvt_pk_bf16_f32 v%d, v8, v9" % (32 + i))
    for i in range(4):
        k("buffer_store_dwordx4 v[%d:%d], v4, s[16:19], 0 offen offset:%d" % (32 + 4 * i, 35 + 4 * i, 16 * i))
    k.label("norm_done")
    return k

def gen_gemm(name, nblk, TN, nK, a_ws, a_bytes, a_stride, b_from_ws, b_off, b_bytes, b_stride, nmt, epi):
    k = Kern(name, vgprs=160, sgprs=64)
    lab = name.replace("_kernel", "")
    R = 64 + TN
    NL = R // 32
    BUF = R * 144
    k("s_cmp_ge_u32 s2, %d" % nblk)
    k("s_cbranch_scc1 %s_done" % lab)
    k("s_load_dwordx2 s[36:37], s[0:1], 104")
    k("s_load_dwordx2 s[4:5], s[0:1], 64")
    k("s_load_dwordx2 s[6:7], s[0:1], 72")
    k("s_load_dwordx2 s[38:39], s[0:1], 88")
    magic = (2**32 + nmt - 1) // nmt
    k("s_mul_hi_u32 s30, s2, 0x%x" % magic)
    k("s_mul_i32 s31, s30, %d" % nmt)
    k("s_sub_u32 s31, s2, s31")
    k("s_waitcnt lgkmcnt(0)")
    k.srd(8, 36, a_bytes, a_ws)
    if b_from_ws:
        k.srd(12, 36, b_bytes, b_off)
    else:
        k.srd(12, 4, b_bytes)
    k("v_lshrrev_b32 v1, 3, v0")
    k("v_and_b32 v2, 7, v0")
    k("v_mul_u32_u24 v3, 144, v1")
    k("v_lshl_add_u32 v3, v2, 4, v3")
    k("s_lshl_b32 s32, s31, 6")
    k("s_mul_i32 s33, s30, %d" % TN)
    k("v_add_u32 v4, s32, v1")
    k("s_mov_b32 s34, %d" % a_stride)
    k("v_mul_lo_u32 v4, v4, s34")
    k("v_lshl_add_u32 v4, v2, 4, v4")
    k("v_add_u32 v5, s33, v1")
    k("s_mov_b32 s34, %d" % b_stride)
    k("v_mul_lo_u32 v5, v5, s34")
    k("v_lshl_add_u32 v5, v2, 4, v5")
    def gload(kc):
        for i in range(NL):
            if i < 2:
                k("v_add_u32 v6, %d, v4" % (i * 32 * a_stride + kc * 128))
                k("buffer_load_dwordx4 v[%d:%d], v6, s[8:11], 0 offen" % (16 + 4 * i, 19 + 4 * i))
            else:
                k("v_add_u32 v6, %d, v5" % ((i - 2) * 32 * b_stride + kc * 128))
                k("buffer_load_dwordx4 v[%d:%d], v6, s[12:15], 0 offen" % (16 + 4 * i, 19 + 4 * i))
    k("v_lshrrev_b32 v7, 6, v0")
    k("s_nop 0")
    k("v_readfirstlane_b32 s28, v7")
    k("v_and_b32 v8, 31, v0")
    k("v_bfe_u32 v9, v0, 5, 1")
    k("s_lshr_b32 s29, s28, 1")
    k("s_and_b32 s35, s28, 1")
    k("s_mul_i32 s40, s29, %d" % (32 * 144))
    k("v_mul_u32_u24 v10, 144, v8")
    k("v_lshl_add_u32 v10, v9, 6, v10")
    k("v_add_u32 v11, s40, v10")
    k("s_mul_i32 s40, s35, %d" % (TN // 2 * 144))
    k("s_add_u32 s40, s40, %d" % (64 * 144))
    k("v_add_u32 v12, s40, v10")
    NNT = TN // 64
    for r in range(64, 64 + 16 * NNT):
        k("v_mov_b32 v%d, 0" % r)
    gload(0)
    for kc in range(nK):
        bo = (kc & 1) * BUF
        k("s_waitcnt vmcnt(0)")
        for i in range(NL):
            k("ds_write_b128 v3, v[%d:%d] offset:%d" % (16 + 4 * i, 19 + 4 * i, bo + i * 32 * 144))
        k("s_waitcnt lgkmcnt(0)")
        k("s_barrier")
        if kc + 1 < nK:
            gload(kc + 1)
        for t in range(4):
            k("ds_read_b128 v[%d:%d], v11 offset:%d" % (96 + 4 * t, 99 + 4 * t, bo + 16 * t))
            for nt in range(NNT):
                k("ds_read_b128 v[%d:%d], v12 offset:%d" % (112 + (t * NNT + nt) * 4, 115 + (t * NNT + nt) * 4, bo + nt * 32 * 144 + 16 * t))
        k("s_waitcnt lgkmcnt(0)")
        for t in range(4):
            for nt in range(NNT):
                acc = 64 + 16 * nt
                bf = 112 + (t * NNT + nt) * 4
                k("v_mfma_f32_32x32x16_bf16 v[%d:%d], v[%d:%d], v[%d:%d], v[%d:%d]" % (acc, acc + 15, 96 + 4 * t, 99 + 4 * t, bf, bf + 3, acc, acc + 15))
    k("s_nop 15")
    k("s_nop 7")
    epi(k, NNT)
    k.label("%s_done" % lab)
    k.ldsbytes = 2 * BUF
    return k

def epi_k3(k, NNT):
    k.srd(16, 36, SZ_SF, WS_Z1)
    k.srd(20, 36, SZ_SF, WS_P)
    k.srd(24, 6, S * 2)
    k("s_mul_i32 s40, s35, %d" % (NNT * 32))
    k("s_add_u32 s40, s40, s33")
    k("v_add_u32 v13, s40, v8")
    k("s_lshl_b32 s41, s29, 5")
    k("s_add_u32 s41, s41, s32")
    k("s_lshl_b32 s41, s41, 1")
    k("v_mul_u32_u24 v14, 1792, v13")
    k("v_lshl_add_u32 v14, v9, 3, v14")
    k("v_add_u32 v14, s41, v14")
    k("v_lshlrev_b32 v15, 1, v13")
    for nt in range(NNT):
        k("buffer_load_ushort v%d, v15, s[24:27], 0 offen offset:%d" % (16 + nt, 64 * nt))
        for q in range(4):
            k("v_add_u32 v6, %d, v14" % (nt * 32 * 1792 + 16 * q))
            k("buffer_load_dwordx2 v[%d:%d], v6, s[16:19], 0 offen" % (20 + nt * 8 + 2 * q, 21 + nt * 8 + 2 * q))
    k("s_waitcnt vmcnt(0)")
    for nt in range(NNT):
        k("v_lshlrev_b32 v%d, 16, v%d" % (16 + nt, 16 + nt))
        for q in range(4):
            for j in range(2):
                zr = 20 + nt * 8 + 2 * q + j
                a0 = 64 + 16 * nt + 4 * q + 2 * j
                k("v_add_f32 v%d, v%d, v%d" % (a0, a0, 16 + nt))
                k("v_add_f32 v%d, v%d, v%d" % (a0 + 1, a0 + 1, 16 + nt))
                k("v_lshlrev_b32 v6, 16, v%d" % zr)
                k("v_and_b32 v7, 0xffff0000, v%d" % zr)
                k("v_mul_f32 v%d, v%d, v6" % (a0, a0))
                k("v_mul_f32 v%d, v%d, v7" % (a0 + 1, a0 + 1))
                k("v_cvt_pk_bf16_f32 v%d, v%d, v%d" % (zr, a0, a0 + 1))
            k("v_add_u32 v6, %d, v14" % (nt * 32 * 1792 + 16 * q))
            k("buffer_store_dwordx2 v[%d:%d], v6, s[20:23], 0 offen" % (20 + nt * 8 + 2 * q, 21 + nt * 8 + 2 * q))

def epi_k4(k, NNT):
    k.srd(16, 36, SZ_SD, WS_H)
    k.srd(20, 38, SZ_SD)
    k("s_mul_i32 s40, s35, %d" % (NNT * 32))
    k("s_add_u32 s40, s40, s33")
    k("v_add_u32 v13, s40, v8")
    k("s_lshl_b32 s41, s29, 5")
    k("s_add_u32 s41, s41, s32")
    k("s_lshl_b32 s41, s41, 1")
    k("v_mul_u32_u24 v14, 896, v13")
    k("v_lshl_add_u32 v14, v9, 3, v14")
    k("v_add_u32 v14, s41, v14")
    for nt in range(NNT):
        for q in range(4):
            k("v_add_u32 v6, %d, v14" % (nt * 32 * 896 + 16 * q))
            k("buffer_load_dwordx2 v[%d:%d], v6, s[16:19], 0 offen" % (20 + nt * 8 + 2 * q, 21 + nt * 8 + 2 * q))
    k("s_waitcnt vmcnt(0)")
    for nt in range(NNT):
        for q in range(4):
            for j in range(2):
                zr = 20 + nt * 8 + 2 * q + j
                a0 = 64 + 16 * nt + 4 * q + 2 * j
                k("v_lshlrev_b32 v6, 16, v%d" % zr)
                k("v_and_b32 v7, 0xffff0000, v%d" % zr)
                k("v_add_f32 v%d, v%d, v6" % (a0, a0))
                k("v_add_f32 v%d, v%d, v7" % (a0 + 1, a0 + 1))
                k("v_cvt_pk_bf16_f32 v%d, v%d, v%d" % (zr, a0, a0 + 1))
            k("v_add_u32 v6, %d, v14" % (nt * 32 * 896 + 16 * q))
            k("buffer_store_dwordx2 v[%d:%d], v6, s[20:23], 0 offen" % (20 + nt * 8 + 2 * q, 21 + nt * 8 + 2 * q))

if __name__ == "__main__":
    k3 = gen_gemm("gemm2_kernel", 224, 128, 32, WS_Z2NT, SZ_SF, 4096, False, 0, S * S * 2, 4096, 14, epi_k3)
    k4 = gen_gemm("gemm3_kernel", 224, 64, 14, WS_WOUTT, D * FH * 2, 1792, True, WS_P, SZ_SF, 1792, 7, epi_k4)
    kerns = [gen_k0(), gen_k1(), gen_k2(), gen_k2b(), k3, k4]
    launches = [("prep_kernel", 259, 0), ("conv_kernel", 448, K1_LDS), ("gemm1_kernel", 224, K2_LDS),
                ("norm_kernel", 224, 2048), ("gemm2_kernel", 224, k3.ldsbytes), ("gemm3_kernel", 224, k4.ldsbytes)]
    txt = build(kerns, launches)
    open("sequential_preLN__ssm_conv_h3__mixer_gmlp__prompt.s", "w").write(txt)
    print("written", len(txt))
```

```python
import sys
sys.path.insert(0, "gen")
from asmlib import Kern
from gen import *
import gen
from gen2 import gelu, quad_sum, f2u, GELU_C, gen_k2b
WS_A1 = 0x1C00000

def gemm(name, nblk, TM, TN, nK, aspec, bspec, nmt, epi, NS=4, swap_from=None, xmap=False):
    k = Kern(name, vgprs=256, sgprs=80)
    lab = name.replace("_kernel", "")
    R = TM + TN
    NI = R // 32
    BUF = R * 128
    MM, NN = TM // 64, TN // 64
    k.MM, k.NN, k.TM, k.TN = MM, NN, TM, TN
    k("s_cmp_ge_u32 s2, %d" % nblk)
    k("s_cbranch_scc1 %s_done" % lab)
    k("s_load_dwordx2 s[36:37], s[0:1], 104")
    k("s_load_dwordx2 s[4:5], s[0:1], 64")
    k("s_load_dwordx2 s[6:7], s[0:1], 72")
    k("s_load_dwordx2 s[38:39], s[0:1], 88")
    magic = (2**32 + nmt - 1) // nmt
    k("s_mul_hi_u32 s30, s2, 0x%x" % magic)
    k("s_mul_i32 s31, s30, %d" % nmt)
    k("s_sub_u32 s31, s2, s31")
    if xmap:
        k("s_and_b32 s46, s2, 7")
        k("s_lshr_b32 s47, s2, 3")
        k("s_lshr_b32 s31, s46, 2")
        k("s_mul_i32 s31, s31, 7")
        k("s_lshr_b32 s30, s47, 2")
        k("s_add_u32 s31, s31, s30")
        k("s_and_b32 s30, s46, 3")
        k("s_lshl_b32 s30, s30, 2")
        k("s_and_b32 s47, s47, 3")
        k("s_add_u32 s30, s30, s47")
    k("s_mov_b32 s40, 0x%x" % f2u(0.044715))
    k("s_mov_b32 s41, 0x%x" % f2u(GELU_C))
    k("v_lshrrev_b32 v7, 6, v0")
    k("s_nop 0")
    k("v_readfirstlane_b32 s27, v7")
    k("s_nop 3")
    k("s_and_b32 s28, s27, 3")
    k("s_waitcnt lgkmcnt(0)")
    for (sd, sp) in ((8, aspec), (12, bspec)):
        if sp[0]:
            k.srd(sd, 36, sp[2], sp[1])
        else:
            k.srd(sd, 4, sp[2])
    k("s_mul_i32 s32, s31, %d" % TM)
    k("s_mul_i32 s33, s30, %d" % TN)
    k("v_and_b32 v1, 63, v0")
    k("v_lshrrev_b32 v2, 3, v1")
    k("v_and_b32 v3, 7, v1")
    k("v_xor_b32 v3, v3, v2")
    k("s_lshl_b32 s34, s28, 3")
    k("v_add_u32 v2, s34, v2")
    srcregs = []
    for i in range(NI):
        row0 = i * 32
        isA = row0 < TM
        sp = aspec if isA else bspec
        base = "s32" if isA else "s33"
        r = 16 + i
        k("v_add_u32 v%d, %s, v2" % (r, base))
        k("v_add_u32 v%d, %d, v%d" % (r, row0 if isA else row0 - TM, r))
        k("s_mov_b32 s35, %d" % sp[3])
        k("v_mul_lo_u32 v%d, v%d, s35" % (r, r))
        k("v_lshl_add_u32 v%d, v3, 4, v%d" % (r, r))
        srcregs.append((r, 8 if isA else 12))
    k("s_lshl_b32 s43, s28, 10")
    def dma(kc):
        slot = kc % NS
        k("s_mov_b32 s42, %d" % (kc * 128))
        for i in range(NI):
            k("s_add_u32 m0, s43, %d" % (slot * BUF + i * 4096))
            k("s_nop 0")
            k("buffer_load_dwordx4 v%d, s[%d:%d], s42 offen lds" % (srcregs[i][0], srcregs[i][1], srcregs[i][1] + 3))
    k("s_cmp_lt_u32 s27, 4")
    k("s_cbranch_scc1 %s_comp" % lab)
    for kc in range(min(NS - 1, nK)):
        dma(kc)
    for kc in range(nK):
        k("s_waitcnt vmcnt(%d)" % (min(NS - 2, nK - 1 - kc) * NI))
        k("s_barrier")
        if kc + NS - 1 < nK:
            dma(kc + NS - 1)
    k("s_endpgm")
    k.label("%s_comp" % lab)
    k("v_and_b32 v8, 31, v0")
    k("v_bfe_u32 v9, v0, 5, 1")
    k("s_lshr_b32 s29, s28, 1")
    k("s_and_b32 s35, s28, 1")
    k("v_and_b32 v10, 7, v0")
    k("v_lshlrev_b32 v11, 7, v8")
    k("s_mul_i32 s44, s29, %d" % (TM // 2 * 128))
    k("s_mul_i32 s45, s35, %d" % (TN // 2 * 128))
    k("s_add_u32 s45, s45, %d" % (TM * 128))
    for t in range(4):
        k("v_lshl_add_u32 v12, v9, 2, %d" % t)
        k("v_xor_b32 v12, v12, v10")
        k("v_lshl_add_u32 v12, v12, 4, v11")
        k("v_add_u32 v%d, s44, v12" % (32 + t))
        k("v_add_u32 v%d, s45, v12" % (36 + t))
        k("v_add_u32 v%d, %d, v%d" % (40 + t, 2 * BUF, 32 + t))
        k("v_add_u32 v%d, %d, v%d" % (44 + t, 2 * BUF, 36 + t))
        if NS > 4:
            k("v_add_u32 v%d, %d, v%d" % (48 + t, 4 * BUF, 32 + t))
            k("v_add_u32 v%d, %d, v%d" % (52 + t, 4 * BUF, 36 + t))
    for r in range(64, 64 + 16 * MM * NN):
        k("v_mov_b32 v%d, 0" % r)
    AF, BFR = 128, 128 + 16 * MM
    def body(sw):
        for kc in range(nK):
            inflight_after = min(NS - 2, nK - 1 - kc)
            k("s_barrier")
            slot = kc % NS
            ar, br, so = (32 + 8 * (slot // 2), 36 + 8 * (slot // 2), (slot % 2) * BUF)
            for t in range(4):
                for mi in range(MM):
                    k("ds_read_b128 v[%d:%d], v%d offset:%d" % (AF + (t * MM + mi) * 4, AF + (t * MM + mi) * 4 + 3, ar + t, so + mi * 4096))
                for ni in range(NN):
                    k("ds_read_b128 v[%d:%d], v%d offset:%d" % (BFR + (t * NN + ni) * 4, BFR + (t * NN + ni) * 4 + 3, br + t, so + ni * 4096))
            for t in range(4):
                k("s_waitcnt lgkmcnt(%d)" % ((3 - t) * (MM + NN)))
                for mi in range(MM):
                    for ni in range(NN):
                        acc = 64 + 16 * (mi * NN + ni)
                        a = AF + (t * MM + mi) * 4
                        b = BFR + (t * NN + ni) * 4
                        if sw:
                            a, b = b, a
                        k("v_mfma_f32_32x32x16_bf16 v[%d:%d], v[%d:%d], v[%d:%d], v[%d:%d]" % (acc, acc + 15, a, a + 3, b, b + 3, acc, acc + 15))
        k("s_nop 15")
        k("s_nop 7")
    if swap_from is None:
        body(False)
        epi(k, False)
    else:
        k("s_cmp_ge_u32 s31, %d" % swap_from)
        k("s_cbranch_scc1 %s_sw" % lab)
        body(False)
        epi(k, False)
        k("s_branch %s_done" % lab)
        k.label("%s_sw" % lab)
        body(True)
        epi(k, True)
    k.label("%s_done" % lab)
    k.ldsbytes = max(NS * BUF, 1024)
    return k

def epi_k3(k, sw):
    MM, NN = k.MM, k.NN
    k.srd(16, 36, SZ_SF, WS_Z1)
    k.srd(20, 36, SZ_SF, WS_P)
    k.srd(24, 6, S * 2)
    k("s_mul_i32 s40, s35, %d" % (NN * 32))
    k("s_add_u32 s40, s40, s33")
    k("v_add_u32 v13, s40, v8")
    k("s_mul_i32 s41, s29, %d" % (MM * 32))
    k("s_add_u32 s41, s41, s32")
    k("s_lshl_b32 s41, s41, 1")
    k("v_mul_u32_u24 v14, 1792, v13")
    k("v_lshl_add_u32 v14, v9, 3, v14")
    k("v_add_u32 v14, s41, v14")
    k("v_lshlrev_b32 v15, 1, v13")
    for ni in range(NN):
        k("buffer_load_ushort v%d, v15, s[24:27], 0 offen offset:%d" % (16 + ni, 64 * ni))
        for mi in range(MM):
            for q in range(4):
                zr = 128 + ((ni * MM + mi) * 4 + q) * 2
                k("v_add_u32 v6, %d, v14" % (ni * 32 * 1792 + mi * 64 + 16 * q))
                k("buffer_load_dwordx2 v[%d:%d], v6, s[16:19], 0 offen" % (zr, zr + 1))
    k("s_waitcnt vmcnt(0)")
    for ni in range(NN):
        k("v_lshlrev_b32 v%d, 16, v%d" % (16 + ni, 16 + ni))
        for mi in range(MM):
            for q in range(4):
                zr0 = 128 + ((ni * MM + mi) * 4 + q) * 2
                for j in range(2):
                    zr = zr0 + j
                    a0 = 64 + 16 * (mi * NN + ni) + 4 * q + 2 * j
                    k("v_add_f32 v%d, v%d, v%d" % (a0, a0, 16 + ni))
                    k("v_add_f32 v%d, v%d, v%d" % (a0 + 1, a0 + 1, 16 + ni))
                    k("v_lshlrev_b32 v6, 16, v%d" % zr)
                    k("v_and_b32 v7, 0xffff0000, v%d" % zr)
                    k("v_mul_f32 v%d, v%d, v6" % (a0, a0))
                    k("v_mul_f32 v%d, v%d, v7" % (a0 + 1, a0 + 1))
                    k("v_cvt_pk_bf16_f32 v%d, v%d, v%d" % (zr, a0, a0 + 1))
                k("v_add_u32 v6, %d, v14" % (ni * 32 * 1792 + mi * 64 + 16 * q))
                k("buffer_store_dwordx2 v[%d:%d], v6, s[20:23], 0 offen" % (zr0, zr0 + 1))

def epi_k4(k, sw):
    MM, NN = k.MM, k.NN
    k.srd(16, 36, SZ_SD, WS_H)
    k.srd(20, 38, SZ_SD)
    k("s_mul_i32 s40, s35, %d" % (NN * 32))
    k("s_add_u32 s40, s40, s33")
    k("v_add_u32 v13, s40, v8")
    k("s_mul_i32 s41, s29, %d" % (MM * 32))
    k("s_add_u32 s41, s41, s32")
    k("s_lshl_b32 s41, s41, 1")
    k("v_mul_u32_u24 v14, 896, v13")
    k("v_lshl_add_u32 v14, v9, 3, v14")
    k("v_add_u32 v14, s41, v14")
    for ni in range(NN):
        for mi in range(MM):
            for q in range(4):
                zr = 128 + ((ni * MM + mi) * 4 + q) * 2
                k("v_add_u32 v6, %d, v14" % (ni * 32 * 896 + mi * 64 + 16 * q))
                k("buffer_load_dwordx2 v[%d:%d], v6, s[16:19], 0 offen" % (zr, zr + 1))
    k("s_waitcnt vmcnt(0)")
    for ni in range(NN):
        for mi in range(MM):
            for q in range(4):
                zr0 = 128 + ((ni * MM + mi) * 4 + q) * 2
                for j in range(2):
                    zr = zr0 + j
                    a0 = 64 + 16 * (mi * NN + ni) + 4 * q + 2 * j
                    k("v_lshlrev_b32 v6, 16, v%d" % zr)
                    k("v_and_b32 v7, 0xffff0000, v%d" % zr)
                    k("v_add_f32 v%d, v%d, v6" % (a0, a0))
                    k("v_add_f32 v%d, v%d, v7" % (a0 + 1, a0 + 1))
                    k("v_cvt_pk_bf16_f32 v%d, v%d, v%d" % (zr, a0, a0 + 1))
                k("v_add_u32 v6, %d, v14" % (ni * 32 * 896 + mi * 64 + 16 * q))
                k("buffer_store_dwordx2 v[%d:%d], v6, s[20:23], 0 offen" % (zr0, zr0 + 1))

def epi_k1(k, sw):
    MM, NN = k.MM, k.NN
    lab = "gemm1"
    for r in range(64, 64 + 16 * MM * NN):
        gelu(k, r, 6, 7)
    for a in range(MM * NN):
        for p in range(8):
            k("v_cvt_pk_bf16_f32 v%d, v%d, v%d" % (128 + a * 8 + p, 64 + a * 16 + 2 * p, 65 + a * 16 + 2 * p))
    k("s_mul_i32 s40, s35, %d" % (NN * 32))
    k("s_add_u32 s40, s40, s33")
    k("s_mul_i32 s41, s29, %d" % (MM * 32))
    k("s_add_u32 s41, s41, s32")
    if not sw:
        k.srd(16, 36, SZ_SF, WS_Z1)
        k("v_add_u32 v13, s40, v8")
        k("v_mul_u32_u24 v14, 1792, v13")
        k("v_lshl_add_u32 v14, v9, 3, v14")
        k("s_lshl_b32 s41, s41, 1")
        k("v_add_u32 v14, s41, v14")
        for mi in range(MM):
            for ni in range(NN):
                for q in range(4):
                    a = mi * NN + ni
                    k("v_add_u32 v6, %d, v14" % (ni * 32 * 1792 + mi * 64 + 16 * q))
                    k("buffer_store_dwordx2 v[%d:%d], v6, s[16:19], 0 offen" % (128 + a * 8 + 2 * q, 129 + a * 8 + 2 * q))
    else:
        k.srd(16, 36, SZ_SF, WS_Z2T)
        k.srd(20, 36, S * 56, WS_STATS)
        k("s_sub_u32 s41, s41, 896")
        k("v_add_u32 v13, s41, v8")
        k("v_lshlrev_b32 v14, 12, v13")
        k("v_lshl_add_u32 v14, v9, 3, v14")
        k("s_lshl_b32 s46, s40, 1")
        k("v_add_u32 v14, s46, v14")
        for mi in range(MM):
            for ni in range(NN):
                for q in range(4):
                    a = mi * NN + ni
                    k("v_add_u32 v6, %d, v14" % (mi * 32 * 4096 + ni * 64 + 16 * q))
                    k("buffer_store_dwordx2 v[%d:%d], v6, s[16:19], 0 offen" % (128 + a * 8 + 2 * q, 129 + a * 8 + 2 * q))
        k("s_barrier")
        k("v_mov_b32 v10, 0")
        k("v_lshlrev_b32 v11, 2, v0")
        k("ds_write_b32 v11, v10")
        k("s_waitcnt lgkmcnt(0)")
        k("s_barrier")
        k("s_mul_i32 s46, s35, %d" % (NN * 32 * 8))
        k("v_lshlrev_b32 v11, 5, v9")
        k("v_add_u32 v11, s46, v11")
        k("s_mov_b32 s52, 0x80008000")
        k("s_mov_b32 s53, 0x80008000")
        for ni in range(NN):
            for i in range(16):
                p = i // 2
                k("v_mov_b32 v14, 0")
                k("v_mov_b32 v15, 0")
                for mi in range(MM):
                    a = mi * NN + ni
                    if i % 2 == 0:
                        k("v_lshlrev_b32 v12, 16, v%d" % (128 + a * 8 + p))
                    else:
                        k("v_and_b32 v12, 0xffff0000, v%d" % (128 + a * 8 + p))
                    k("v_add_f32 v14, v14, v12")
                    k("v_fmac_f32 v15, v12, v12")
                for sft in (1, 2, 4, 8):
                    k("s_nop 1")
                    k("v_add_f32_dpp v14, v14, v14 row_shr:%d row_mask:0xf bank_mask:0xf bound_ctrl:0" % sft)
                    k("v_add_f32_dpp v15, v15, v15 row_shr:%d row_mask:0xf bank_mask:0xf bound_ctrl:0" % sft)
                row = 32 * ni + 8 * (i // 4) + (i % 4)
                k("s_mov_b64 s[54:55], exec")
                k("s_mov_b64 exec, s[52:53]")
                k("ds_add_f32 v11, v14 offset:%d" % (row * 8))
                k("ds_add_f32 v11, v15 offset:%d" % (row * 8 + 4))
                k("s_mov_b64 exec, s[54:55]")
        k("s_waitcnt lgkmcnt(0)")
        k("s_barrier")
        k("v_lshlrev_b32 v11, 2, v0")
        k("ds_read_b32 v12, v11")
        k("v_lshrrev_b32 v13, 1, v0")
        k("v_add_u32 v13, s33, v13")
        k("v_mul_u32_u24 v13, 56, v13")
        k("v_and_b32 v14, 1, v0")
        k("v_lshl_add_u32 v13, v14, 2, v13")
        k("s_sub_u32 s46, s31, 7")
        k("s_lshl_b32 s46, s46, 3")
        k("v_add_u32 v13, s46, v13")
        k("s_waitcnt lgkmcnt(0)")
        k("buffer_store_dword v12, v13, s[20:23], 0 offen")

def gen_ln():
    k = Kern("lnprep_kernel", vgprs=160, sgprs=64)
    k("s_cmp_ge_u32 s2, 64")
    k("s_cbranch_scc1 lnprep_done")
    k("s_load_dwordx2 s[4:5], s[0:1], 0")
    k("s_load_dwordx2 s[36:37], s[0:1], 104")
    k("s_lshl_b32 s32, s2, 5")
    k("s_mov_b32 s42, 0x%x" % f2u(1.0 / 448))
    k("s_waitcnt lgkmcnt(0)")
    k.srd(8, 4, SZ_SD)
    k.srd(12, 36, SZ_SD, WS_YPT)
    k.srd(16, 36, SZ_SD, WS_H)
    k.srd(20, 36, SZ_SD, WS_A1)
    k("v_lshrrev_b32 v1, 2, v0")
    k("v_and_b32 v2, 3, v0")
    k("v_lshlrev_b32 v3, 12, v1")
    k("v_lshl_add_u32 v3, v2, 4, v3")
    k("s_lshl_b32 s33, s32, 1")
    k("v_add_u32 v3, s33, v3")
    k("v_mul_u32_u24 v4, 80, v1")
    k("v_lshl_add_u32 v4, v2, 4, v4")
    for it in range(7):
        k("v_add_u32 v5, 0x%x, v3" % (it * 64 * 4096))
        k("buffer_load_dwordx4 v[%d:%d], v5, s[12:15], 0 offen" % (96 + 4 * it, 99 + 4 * it))
    k("v_lshrrev_b32 v6, 3, v0")
    k("v_and_b32 v7, 7, v0")
    k("v_add_u32 v8, s32, v6")
    k("v_mul_u32_u24 v8, 896, v8")
    k("v_mul_u32_u24 v9, 112, v7")
    k("v_add_u32 v8, v8, v9")
    for i in range(7):
        k("buffer_load_dwordx4 v[%d:%d], v8, s[8:11], 0 offen offset:%d" % (64 + 4 * i, 67 + 4 * i, 16 * i))
    k("s_waitcnt vmcnt(7)")
    for it in range(7):
        k("ds_write_b128 v4, v[%d:%d] offset:%d" % (96 + 4 * it, 99 + 4 * it, it * 64 * 80))
    k("s_waitcnt vmcnt(0) lgkmcnt(0)")
    k("s_barrier")
    def oct_sum(r):
        quad_sum(k, r)
        k("v_add_f32_dpp v%d, v%d, v%d row_half_mirror row_mask:0xf bank_mask:0xf" % (r, r, r))
        k("s_nop 1")
    def unpack():
        for i in range(28):
            k("v_lshlrev_b32 v%d, 16, v%d" % (96 + 2 * i, 64 + i))
            k("v_and_b32 v%d, 0xffff0000, v%d" % (97 + 2 * i, 64 + i))
    def stats(mean, rs):
        k("v_mov_b32 v%d, 0" % mean)
        for i in range(56):
            k("v_add_f32 v%d, v%d, v%d" % (mean, mean, 96 + i))
        oct_sum(mean)
        k("v_mul_f32 v%d, s42, v%d" % (mean, mean))
        k("v_mov_b32 v%d, 0" % rs)
        for i in range(56):
            k("v_sub_f32 v14, v%d, v%d" % (96 + i, mean))
            k("v_fmac_f32 v%d, v14, v14" % rs)
        oct_sum(rs)
        k("v_mov_b32 v14, 0x%x" % f2u(1e-5))
        k("v_fma_f32 v%d, v%d, s42, v14" % (rs, rs))
        k("v_rsq_f32 v%d, v%d" % (rs, rs))
        k("s_nop 0")
    unpack()
    stats(12, 13)
    k("v_mul_u32_u24 v15, %d, v7" % (56 * 80))
    k("v_lshl_add_u32 v15, v6, 1, v15")
    for i in range(56):
        k("ds_read_u16 v%d, v15 offset:%d" % (16 + (i % 28) if i < 28 else 36 + i, i * 80))
    k("s_waitcnt lgkmcnt(0)")
    for i in range(56):
        yr = 16 + i if i < 28 else 36 + i
        k("v_lshlrev_b32 v%d, 16, v%d" % (yr, yr))
        k("v_sub_f32 v14, v%d, v12" % (96 + i))
        k("v_mul_f32 v14, v14, v13")
        k("v_fmac_f32 v%d, v14, v%d" % (96 + i, yr))
    for i in range(28):
        k("v_cvt_pk_bf16_f32 v%d, v%d, v%d" % (64 + i, 96 + 2 * i, 97 + 2 * i))
    unpack()
    stats(12, 13)
    for i in range(7):
        k("buffer_store_dwordx4 v[%d:%d], v8, s[16:19], 0 offen offset:%d" % (64 + 4 * i, 67 + 4 * i, 16 * i))
    for i in range(28):
        k("v_sub_f32 v%d, v%d, v12" % (96 + 2 * i, 96 + 2 * i))
        k("v_sub_f32 v%d, v%d, v12" % (97 + 2 * i, 97 + 2 * i))
        k("v_mul_f32 v%d, v%d, v13" % (96 + 2 * i, 96 + 2 * i))
        k("v_mul_f32 v%d, v%d, v13" % (97 + 2 * i, 97 + 2 * i))
        k("v_cvt_pk_bf16_f32 v%d, v%d, v%d" % (16 + i, 96 + 2 * i, 97 + 2 * i))
    for i in range(7):
        k("buffer_store_dwordx4 v[%d:%d], v8, s[20:23], 0 offen offset:%d" % (16 + 4 * i, 19 + 4 * i, 16 * i))
    k.label("lnprep_done")
    return k

if __name__ == "__main__":
    k1 = gemm("gemm1_kernel", 224, 128, 128, 7, (True, WS_WINT, F * D * 2, 896), (True, WS_A1, SZ_SD, 896), 14, epi_k1, NS=4, swap_from=7, xmap=True)
    k3 = gemm("gemm2_kernel", 224, 64, 128, 32, (True, WS_Z2NT, SZ_SF, 4096), (False, 0, S * S * 2, 4096), 14, epi_k3, NS=6, xmap=True)
    k4 = gemm("gemm3_kernel", 224, 64, 64, 14, (True, WS_WOUTT, D * FH * 2, 1792), (True, WS_P, SZ_SF, 1792), 7, epi_k4, NS=6)
    kerns = [gen_k0(), gen_k1(), gen_ln(), k1, gen_k2b(), k3, k4]
    launches = [("prep_kernel", 259, 0), ("conv_kernel", 448, K1_LDS), ("lnprep_kernel", 64, 448 * 80),
                ("gemm1_kernel", 224, k1.ldsbytes), ("norm_kernel", 224, 2048),
                ("gemm2_kernel", 224, k3.ldsbytes), ("gemm3_kernel", 224, k4.ldsbytes)]
    txt = build(kerns, launches)
    for nm in ("gemm1", "gemm2", "gemm3"):
        txt = txt.replace("kernel=%s_kernel grid=(224,1,1) block=(256,1,1)" % nm, "kernel=%s_kernel grid=(224,1,1) block=(512,1,1)" % nm)
    open("sequential_preLN__ssm_conv_h3__mixer_gmlp__prompt.s", "w").write(txt)
    print("written", len(txt))
```
